```python
import torch

def _softmax(x, axis=-1):
    return torch.softmax(x, dim=axis)

def _gelu(x):
    return torch.nn.functional.gelu(x, approximate='tanh')

def _silu(x):
    return torch.nn.functional.silu(x)

def _sigmoid(x):
    return torch.sigmoid(x)

def _layernorm(x, axis=-1, eps=1e-05):
    m = x.mean(dim=axis, keepdim=True)
    v = x.var(dim=axis, keepdim=True, unbiased=False)
    return (x - m) / torch.sqrt(v + eps)

def _scatter_add(tgt, idx, src, axis=0):
    return tgt.clone().index_add_(axis, idx, src)

def _segment_sum(src, seg, n):
    out = torch.zeros((n,) + src.shape[1:], dtype=src.dtype)
    return out.index_add_(0, seg, src)

def _pad(x, pw):
    flat = tuple((v for pair in reversed(pw) for v in pair))
    return torch.nn.functional.pad(x, flat)
kernel_name = 'sequential_preLN__mha_block__mixer_gmlp__prompt'

def setup_inputs():

    _w = lambda a: (lambda t: t.to(torch.bfloat16) if t.is_floating_point() else t)(torch.as_tensor(a))

    def _A_setup():
        B, S, D, H = (1, 2048, 448, 16)
        return {'x': _w((lambda *s: torch.randn(*s, dtype=torch.bfloat16) * 0.05)(B, S, D)), 'wqkv': _w((lambda *s: torch.randn(*s, dtype=torch.bfloat16) * 0.05)(D, 3 * D)), 'wo': _w((lambda *s: torch.randn(*s, dtype=torch.bfloat16) * 0.05)(D, D))}
    _A_in = _A_setup()

    def _B_setup():
        B, S, D, F = (1, 2048, 448, 1792)
        Fh = F // 2
        return {'x': _w((lambda *s: torch.randn(*s, dtype=torch.bfloat16) * 0.05)(B, S, D)), 'w_in': _w((lambda *s: torch.randn(*s, dtype=torch.bfloat16) * 0.4)(D, 2 * Fh)), 'w_sp': _w(0.01 * (lambda *s: torch.randn(*s, dtype=torch.bfloat16) * 0.4)(S, S)), 'b_sp': _w(1.0 + 0.01 * (lambda *s: torch.randn(*s, dtype=torch.bfloat16) * 0.05)(S)), 'w_out': _w((lambda *s: torch.randn(*s, dtype=torch.bfloat16) * 0.05)(Fh, D))}
    _B_in = _B_setup()
    return {'A_x': _A_in['x'], 'A_wqkv': _A_in['wqkv'], 'A_wo': _A_in['wo'], 'B_x': _B_in['x'], 'B_w_in': _B_in['w_in'], 'B_w_sp': _B_in['w_sp'], 'B_b_sp': _B_in['b_sp'], 'B_w_out': _B_in['w_out']}

def reference(A_x, A_wqkv, A_wo, B_x, B_w_in, B_w_sp, B_b_sp, B_w_out):

    def _A_ref(x, wqkv, wo):
        B, S, D = x.shape
        H = 16
        Dh = D // H
        qkv = (lambda x, *d: x.permute(*d))((x @ wqkv).reshape(B, S, 3, H, Dh), 2, 0, 3, 1, 4)
        q, k, v = (qkv[0], qkv[1], qkv[2])
        scores = torch.einsum('bhqd,bhkd->bhqk', q, k) * Dh ** (-0.5)
        p = _softmax(scores, axis=-1)
        o = torch.einsum('bhqk,bhkd->bhqd', p, v)
        return (lambda x, *d: x.permute(*d))(o, 0, 2, 1, 3).reshape(B, S, D) @ wo

    def _B_ref(x, w_in, w_sp, b_sp, w_out):
        B, S, D = x.shape
        F = w_in.shape[-1]
        Fh = F // 2
        z = _gelu(torch.einsum('bsd,df->bsf', x, w_in))
        z1 = z[..., :Fh].clone()
        z2 = _layernorm(z[..., Fh:], axis=-1)
        g = torch.einsum('ts,bsf->btf', w_sp, z2) + b_sp[None, :, None]
        return torch.einsum('bsf,fd->bsd', z1 * g, w_out)
    x = A_x
    h = x + _A_ref(_layernorm(x, axis=-1), A_wqkv, A_wo)
    h2 = h + _B_ref(_layernorm(h, axis=-1), B_w_in, B_w_sp, B_b_sp, B_w_out)
    return h2
```

```python
import re

TRANS = ("v_exp_f32", "v_log_f32", "v_rcp_f32", "v_rsq_f32", "v_sqrt_f32", "v_sin_f32", "v_cos_f32")
_REG = re.compile(r"^-?(?:abs\()?([vas])(?:(\d+)|\[(\d+):(\d+)\])\)?$")

def regs_of(tok):
    tok = tok.strip()
    if tok in ("vcc", "exec", "m0", "scc"):
        return [(tok, 0)]
    if tok in ("vcc_lo", "vcc_hi"):
        return [("vcc", 0)]
    if tok in ("exec_lo", "exec_hi"):
        return [("exec", 0)]
    m = _REG.match(tok)
    if not m:
        return []
    k = m.group(1)
    if m.group(2) is not None:
        return [(k, int(m.group(2)))]
    return [(k, i) for i in range(int(m.group(3)), int(m.group(4)) + 1)]

def split_ops(s):
    out, depth, cur = [], 0, ""
    for ch in s:
        if ch in "[(":
            depth += 1
        if ch in "])":
            depth -= 1
        if ch == "," and depth == 0:
            out.append(cur.strip()); cur = ""
        else:
            cur += ch
    if cur.strip():
        out.append(cur.strip())
    return out

class Ins:
    __slots__ = ("text", "op", "rd", "wr", "cls", "srcc", "srcab", "passes", "dpp", "nops", "wvm", "wlg",
                 "tok", "need_vm", "need_lg", "is_label", "storedata", "raw")
    def __init__(self, text):
        self.text = text
        self.nops = 0; self.wvm = None; self.wlg = None
        self.need_vm = []; self.need_lg = []
        self.raw = False
        self.parse()
    def parse(self):
        t = self.text.split(";")[0].strip()
        self.is_label = t.endswith(":")
        self.rd, self.wr, self.srcc, self.srcab, self.storedata = set(), set(), set(), set(), set()
        self.passes = 0; self.dpp = False
        if self.is_label or not t or t.startswith("."):
            self.op = ""; self.cls = "none"; return
        p = t.split(None, 1)
        op = p[0]; self.op = op
        rest = p[1] if len(p) > 1 else ""
        ops = split_ops(rest)
        mods = ""
        if ops:
            q = ops[-1].split(None, 1)
            ops[-1] = q[0]
            mods = q[1] if len(q) > 1 else ""
        R = [regs_of(o) for o in ops]
        def rd(*idx):
            for i in idx:
                if i < len(R): self.rd.update(R[i])
        def wr(*idx):
            for i in idx:
                if i < len(R): self.wr.update(R[i])
        n = len(R)
        if op.startswith("v_mfma"):
            self.cls = "mfma"
            self.passes = 8 if "32x32x16" in op else 4
            wr(0); rd(1, 2, 3)
            self.srcab = set(R[1]) | set(R[2]); self.srcc = set(R[3])
        elif op.startswith("buffer_load") or op.startswith("global_load"):
            self.cls = "vmem"
            if " lds" in " " + mods or "_lds_" in op:
                rd(*range(n)); self.rd.add(("m0", 0)); self.cls = "dma"
            else:
                wr(0); rd(*range(1, n))
        elif op.startswith("buffer_store") or op.startswith("global_store"):
            self.cls = "vmem"; rd(*range(n))
            di = 0 if op.startswith("buffer") else 1
            if "x3" in op or "x4" in op: self.storedata = set(R[di])
        elif op.startswith("buffer_atomic") or op.startswith("global_atomic"):
            self.cls = "vmem"; rd(*range(n))
            if "sc0" in mods: wr(0)
        elif op in ("buffer_wbl2", "buffer_inv"):
            self.cls = "vmem"
        elif op.startswith("ds_read") or op.startswith("ds_bpermute") or op.startswith("ds_swizzle"):
            self.cls = "ds"; wr(0); rd(*range(1, n))
        elif op.startswith("ds_"):
            self.cls = "ds"; rd(*range(n))
        elif op.startswith("s_load") or op in ("s_memtime", "s_memrealtime"):
            self.cls = "smem"; wr(0); rd(*range(1, n))
        elif op.startswith("s_"):
            self.cls = "salu"
            if op in ("s_waitcnt", "s_nop", "s_barrier", "s_endpgm", "s_sleep", "s_setprio", "s_branch"):
                pass
            elif op.startswith("s_cbranch"):
                if "vcc" in op: self.rd.add(("vcc", 0))
                if "exec" in op: self.rd.add(("exec", 0))
            elif op.startswith("s_cmp"):
                rd(*range(n))
            else:
                wr(0); rd(*range(1, n))
                if "saveexec" in op: self.wr.add(("exec", 0))
        elif op.startswith("v_"):
            self.cls = "valu"
            base = op.replace("_e32", "").replace("_e64", "").replace("_dpp", "").replace("_sdwa", "")
            if base in TRANS: self.cls = "trans"
            if base.startswith("v_dot2"): self.cls = "dot"
            self.dpp = ("quad_perm" in mods or "row_" in mods or "wave_" in mods or op.endswith("_dpp"))
            if base.startswith("v_permlane"):
                wr(0, 1); rd(0, 1); self.cls = "perml"
            elif base.startswith("v_cmp"):
                wr(0); rd(*range(1, n))
            elif base in ("v_add_co_u32", "v_sub_co_u32", "v_addc_co_u32", "v_subb_co_u32"):
                wr(0, 1); rd(*range(2, n))
            else:
                wr(0); rd(*range(1, n))
                if base.startswith("v_fmac") or base.startswith("v_dot2c") or base.startswith("v_writelane") or self.dpp:
                    rd(0)
                if base == "v_cndmask_b32" and n == 3:
                    self.rd.add(("vcc", 0))
            if base.startswith("v_dot2") and n == 4:
                self.srcc = set(R[3]); self.srcab = set(R[1]) | set(R[2])
        else:
            raise ValueError("unknown instruction: " + t)

def isvec(r): return r[0] in ("v", "a")
VALUS = ("valu", "trans", "dot", "perml")

def hazard(prod, cons):
    w = 0
    pv = prod.cls in VALUS; cv = cons.cls in VALUS
    pw = prod.wr
    if pv:
        vw = {r for r in pw if isvec(r)}
        sw = pw - vw
        if vw:
            if cons.cls == "mfma" and vw & cons.rd: w = max(w, 2)
            if cons.cls == "perml" and vw & cons.rd: w = max(w, 2)
            if cons.dpp and vw & cons.rd: w = max(w, 2)
            if cons.op.startswith(("v_readfirstlane", "v_readlane")) and vw & cons.rd: w = max(w, 1)
            if prod.cls == "trans" and cv and cons.cls != "trans" and vw & cons.rd: w = max(w, 1)
            if prod.cls == "trans" and cons.cls in ("vmem", "ds", "dma") and vw & cons.rd: w = max(w, 1)
            if prod.cls == "dot":
                if cons.op == prod.op:
                    if vw & cons.srcab: w = max(w, 3)
                elif vw & (cons.rd | cons.wr): w = max(w, 3)
        if sw:
            if (cv or cons.cls == "mfma") and sw & cons.rd:
                w = max(w, 4 if cons.op.startswith(("v_readlane", "v_writelane")) else 2)
            if cons.cls in ("vmem", "dma") and sw & cons.rd: w = max(w, 5)
            if cons.cls == "salu" and sw & cons.rd: w = max(w, 1)
            if ("exec", 0) in sw and (cv or cons.cls == "mfma"): w = max(w, 5)
    if prod.cls == "mfma":
        p8 = prod.passes == 8
        if cons.cls == "mfma":
            if pw & cons.srcab: w = max(w, 12 if p8 else 8)
            if pw & cons.srcc:
                if not (cons.srcc == pw and cons.passes == prod.passes): w = max(w, 10 if p8 else 6)
            elif pw & cons.wr: w = max(w, 10 if p8 else 6)
        elif cons.cls != "salu" and cons.cls != "none" and cons.cls != "smem":
            if pw & (cons.rd | cons.wr): w = max(w, 12 if p8 else 8)
            if cv and prod.srcc & cons.wr: w = max(w, 7 if p8 else 3)
    if prod.storedata and prod.storedata & cons.wr: w = max(w, 2)
    if prod.cls == "salu" and ("m0", 0) in pw and cons.cls == "dma": w = max(w, 1)
    return w

class Ghost:
    def __init__(self, o): self.wr = o.wr; self.o = o

def merge_q(a, b, lab):
    if len(a) == len(b) and all(x is y for x, y in zip(a, b)): return a
    if not a or not b:
        q = a or b
        if len(q) <= 1: return list(q)
    ida = [id(x) for x in a]; idb = [id(x) for x in b]
    if len(a) >= len(b) and ida[len(a) - len(b):] == idb: return a
    if len(b) > len(a) and idb[len(b) - len(a):] == ida: return b
    raise RuntimeError(f"queues differ at label {lab}: drain before the join\n{[x.text for x in a]}\n{[x.text for x in b]}")

class Kern:
    def __init__(self, name):
        self.name = name
        self.seq = []
        self.flow = []
        self.uid = 0
    def I(self, text):
        out = None
        for line in text.split("\n"):
            line = line.strip()
            if not line or line.startswith(";"): continue
            i = Ins(line)
            self.seq.append(i); self.flow.append(i); out = i
        return out
    __call__ = I
    def put(self, ins):
        self.seq.append(ins); self.flow.append(ins); return ins
    def label(self, base):
        self.uid += 1
        return f"L_{self.name}_{base}_{self.uid}"
    def after(self, toks, text="s_nop 0", drop=True):
        i = Ins("s_waitcnt _auto_")
        i.raw = True
        for t in (toks if isinstance(toks, (list, tuple)) else [toks]):
            if t is None: continue
            (i.need_lg if t.cls == "ds" else i.need_vm).append(t)
        self.seq.append(i); self.flow.append(i); return i
    def loop_begin(self):
        return (len(self.seq), len(self.flow))
    def loop_end(self, mark):
        body = self.flow[mark[1]:]
        self.flow.extend(body)
    def _waits(self):
        vm, lg = [], []
        smem = []
        def need(lst, pred):
            k = -1
            for j, o in enumerate(lst):
                if pred(o): k = j
            return k
        snaps = {}
        dead = False
        for i in self.flow:
            if i.is_label:
                lab = i.text.split(":")[0].strip()
                for (svm, slg, ssm) in snaps.pop(lab, []):
                    if dead:
                        vm, lg, smem = list(svm), list(slg), list(ssm); dead = False
                    else:
                        vm = merge_q(vm, svm, lab); lg = merge_q(lg, slg, lab)
                        smem = smem + [o for o in ssm if o not in smem]
                dead = False
            if i.cls == "none": continue
            touch = i.rd | i.wr
            if i.op == "s_waitcnt" and not i.raw:
                m = re.search(r"vmcnt\((\d+)\)", i.text)
                if m: vm = vm[max(0, len(vm) - int(m.group(1))):]
                m = re.search(r"lgkmcnt\((\d+)\)", i.text)
                if m:
                    n = int(m.group(1))
                    lg = lg[max(0, len(lg) - n):]
                    if n == 0: smem = []
                continue
            k = need(vm, lambda o: (o.wr & touch) or any(o is t for t in i.need_vm))
            if k >= 0:
                n = min(63, len(vm) - 1 - k)
                i.wvm = n if i.wvm is None else min(i.wvm, n)
            k = need(lg, lambda o: (o.wr & touch) or any(o is t for t in i.need_lg))
            if k >= 0:
                n = min(15, len(lg) - 1 - k)
                if smem: n = 0
                i.wlg = n if i.wlg is None else min(i.wlg, n)
            if any(o.wr & touch for o in smem):
                i.wlg = 0
            if i.wvm is not None: vm = vm[max(0, len(vm) - i.wvm):]
            if i.wlg is not None:
                lg = lg[max(0, len(lg) - i.wlg):]
                if i.wlg == 0: smem = []
            if i.op.startswith("s_cbranch") or i.op == "s_branch":
                snaps.setdefault(i.text.split()[1], []).append((list(vm), list(lg), list(smem)))
                if i.op == "s_branch": dead = True
            if i.cls in ("vmem", "dma"): vm.append(i)
            elif i.cls == "ds": lg.append(i)
            elif i.cls == "smem": smem.append(i)
    def _nops(self):
        changed = False
        hist = []
        snaps = {}
        for i in self.flow:
            if i.is_label:
                for h in snaps.pop(i.text.split(":")[0].strip(), []): hist = hist + h
            if i.cls == "none": continue
            if i.raw:
                if i.wvm is not None or i.wlg is not None:
                    hist = [(p, d + 1) for p, d in hist]
                continue
            pre = i.nops + (1 if (i.wvm is not None or i.wlg is not None) else 0)
            need = 0
            for p, d in hist:
                h = hazard(p, i)
                if h > d + pre: need = max(need, h - d - pre)
            if need:
                i.nops += need; pre += need; changed = True
            step = pre + 1
            if i.op == "s_nop": step = pre + int(i.text.split()[1]) + 1
            hist = [(p, d + step) for p, d in hist if d + step < 14]
            hist.append((i, 0))
            if i.op.startswith("s_cbranch") or i.op == "s_branch":
                snaps.setdefault(i.text.split()[1], []).append(list(hist))
        return changed
    def finish(self):
        for _ in range(3): self._waits()
        while self._nops(): pass
        out = []
        for i in self.seq:
            n = i.nops
            while n > 0:
                k = min(n, 16); out.append(f"    s_nop {k-1}"); n -= k
            w = []
            if i.wvm is not None: w.append(f"vmcnt({i.wvm})")
            if i.wlg is not None: w.append(f"lgkmcnt({i.wlg})")
            if w: out.append("    s_waitcnt " + " ".join(w))
            if i.raw: continue
            out.append(i.text if i.is_label else "    " + i.text)
        return "\n".join(out) + "\n"

def vr(b, n=1, k="v"):
    return f"{k}{b}" if n == 1 else f"{k}[{b}:{b+n-1}]"
def sr(b, n=1): return vr(b, n, "s")
def ar(b, n=1): return vr(b, n, "a")

class Alloc:
    def __init__(self, lo, hi): self.lo, self.hi, self.used = lo, hi, set(); self.peak = lo
    def get(self, n=1, align=None):
        al = align or (1 if n == 1 else 2)
        b = (self.lo + al - 1) // al * al
        while b + n <= self.hi:
            if not any(r in self.used for r in range(b, b + n)):
                self.used.update(range(b, b + n)); self.peak = max(self.peak, b + n); return b
            b += al
        raise RuntimeError(f"out of registers (need {n})")
    def free(self, b, n=1):
        for r in range(b, b + n): self.used.discard(r)

def interleave(main, fill, start=0):
    out = []
    n = len(main) - start
    k = 0
    for j, m in enumerate(main):
        out.append(m)
        if j >= start and n > 0:
            want = (j - start + 1) * len(fill) // n
            while k < want:
                out.append(fill[k]); k += 1
    out += fill[k:]
    return out
```

```python
from asmb import *
S, D, H, DH, F, FH = 2048, 448, 16, 28, 1792, 896
MB = 1 << 20
Q_OFF, KV_OFF, O_OFF, H_OFF, HS_OFF = 0, 2 * MB, 6 * MB, 8 * MB, 10 * MB
Z2_OFF, Z1_OFF, U_OFF, CS_OFF = 11 * MB, 15 * MB, 19 * MB, 23 * MB
ZS_OFF, FL_OFF, WS_SIZE = 23 * MB + 65536, 24 * MB, 25 * MB
SZ = dict(x=S * D * 2, wqkv=D * 3 * D * 2, wo=D * D * 2, win=D * F * 2, wsp=S * S * 2, bsp=S * 2, wout=FH * D * 2,
          out=S * D * 2, ws=WS_SIZE, dbg=256)
PTR = dict(x=4, wqkv=6, wo=8, bx=10, win=12, wsp=14, bsp=16, wout=18, out=20, dbg=22, ws=24)
S_WG, S_W = 2, 3
ONES = 0x3f803f80

def f2u(x):
    import struct
    return struct.unpack("<I", struct.pack("<f", x))[0]

def prologue(k, nwg=256):
    end = f"L_{k.name}_end"
    k(f"""s_cmp_ge_u32 s2, {nwg}
    s_cbranch_scc1 {end}
    s_load_dwordx16 s[4:19], s[0:1], 0
    s_load_dwordx4 s[20:23], s[0:1], 64
    s_load_dwordx2 s[24:25], s[0:1], 80
    v_lshrrev_b32 v1, 6, v0
    v_and_b32 v0, 63, v0
    v_readfirstlane_b32 s3, v1""")

def srd(k, base, name):
    p = PTR[name]
    k(f"""s_mov_b32 s{base}, s{p}
    s_mov_b32 s{base+1}, s{p+1}
    s_mov_b32 s{base+2}, {SZ[name]}
    s_mov_b32 s{base+3}, 0x20000""")
    return sr(base, 4)

def epilogue(k):
    k(f"L_{k.name}_end:")

def wrap(kerns):
    head = open("sequential_preLN__mha_block__mixer_gmlp__prompt.s.ref").read().split("; Override launch")[0]
    t = head
    for k, nv, acc, lds, thr, grid in kerns:
        t += f"; @launch kernel={k.name}_kernel grid=({grid},1,1) block=({thr},1,1) lds={lds}\n"
    t += '.amdgcn_target "amdgcn-amd-amdhsa--gfx950"\n.text\n'
    for k, nv, acc, lds, thr, grid in kerns:
        n = k.name + "_kernel"
        t += f".globl {n}\n.p2align 8\n.type {n},@function\n{n}:\n" + k.finish() + "    s_endpgm\n"
    t += '.section .rodata,"a"\n'
    for k, nv, acc, lds, thr, grid in kerns:
        t += f""".p2align 6
.amdhsa_kernel {k.name}_kernel
  .amdhsa_next_free_vgpr {nv}
  .amdhsa_next_free_sgpr 102
  .amdhsa_accum_offset {acc}
  .amdhsa_group_segment_fixed_size 0
  .amdhsa_kernarg_size 88
  .amdhsa_user_sgpr_count 2
  .amdhsa_user_sgpr_kernarg_segment_ptr 1
  .amdhsa_system_sgpr_workgroup_id_x 1
.end_amdhsa_kernel
"""
    return t

MF32 = "v_mfma_f32_32x32x16_bf16"
MF16 = "v_mfma_f32_16x16x32_bf16"

def half_sum(k, r, t):
    k(f"v_mov_b32 v{t}, v{r}")
    k(f"v_permlane32_swap_b32 v{r}, v{t}")
    k(f"v_add_f32 v{r}, v{r}, v{t}")

def row_pair_sum(k, r, t):
    k(f"v_mov_b32 v{t}, v{r}")
    k(f"v_permlane16_swap_b32 v{r}, v{t}")
    k(f"v_add_f32 v{r}, v{r}, v{t}")

def dpp_add(k, r, ctl):
    k(f"v_add_f32_dpp v{r}, v{r}, v{r} {ctl} row_mask:0xf bank_mask:0xf")

def ln_finish(k, s, q, n, t):
    k(f"v_mul_f32 v{s}, {f2u(-1.0/n):#x}, v{s}")
    k(f"v_mul_f32 v{q}, {f2u(1.0/n):#x}, v{q}")
    k(f"v_fma_f32 v{q}, -v{s}, v{s}, v{q}")
    k(f"v_max_f32 v{q}, 0, v{q}")
    k(f"v_add_f32 v{q}, {f2u(1e-5):#x}, v{q}")
    k(f"v_rsq_f32 v{q}, v{q}")
    k(f"v_mul_f32 v{s}, v{s}, v{q}")
```

```python
from common import *
import math
QSCALE = DH ** -0.5 * math.log2(math.e)
A_WREG, A_XREG, A_SCR = 0, 61440, 143360
A_LDS = 163840

def phase_a(k, va, st=""):
    X, W, WS, WI = srd(k, 28, "x"), srd(k, 32, "wqkv"), srd(k, 36, "ws"), srd(k, 40, "win")
    sH, sRB, sT, sXO, sWO, sLX, sLW = 44, 45, 46, 47, 48, 49, 50
    sONE, sLO, sHI = 51, 52, 53
    k(f"""s_and_b32 s{sH}, s2, 15
    s_lshr_b32 s{sRB}, s2, 4
    s_mov_b32 s{sONE}, {ONES:#x}""")
    t0, t1, t2 = va.get(), va.get(), va.get()
    vdx = [va.get() for _ in range(4)]
    vdw = va.get()
    k(f"""v_lshrrev_b32 v{t0}, 3, v0
    v_mul_u32_u24 v{t0}, 896, v{t0}
    v_and_b32 v{t1}, 7, v0
    v_lshrrev_b32 v{t2}, 4, v0
    v_xor_b32 v{t1}, v{t1}, v{t2}
    v_lshl_add_u32 v{vdx[0]}, v{t1}, 4, v{t0}
    v_xor_b32 v{t1}, 4, v{t1}
    v_lshl_add_u32 v{vdx[1]}, v{t1}, 4, v{t0}
    v_add_u32 v{vdx[2]}, {2*(7168-1024)}, v{vdx[0]}
    v_add_u32 v{vdx[3]}, {3*(7168-1024)}, v{vdx[1]}
    v_add_u32 v{vdx[1]}, {7168-1024}, v{vdx[1]}
    v_lshrrev_b32 v{t0}, 2, v0
    v_mul_u32_u24 v{t0}, 2688, v{t0}
    v_and_b32 v{t1}, 3, v0
    v_lshl_add_u32 v{vdw}, v{t1}, 4, v{t0}""")
    k(f"""s_lshl_b32 s{sT}, s{sRB}, 2
    s_add_u32 s{sT}, s{sT}, s3
    s_mul_i32 s{sXO}, s{sT}, {32*896}
    s_mul_i32 s{sWO}, s3, {16*2688}
    s_mul_i32 s{sT}, s{sH}, 56
    s_add_u32 s{sWO}, s{sWO}, s{sT}
    s_mul_i32 s{sLX}, s3, 20480
    s_add_u32 s{sLX}, s{sLX}, {A_XREG}
    s_mul_i32 s{sLW}, s3, 3072""")
    dma = {}
    def issue(sg):
        slot = sg % 5
        toks = []
        k(f"s_add_u32 m0, s{sLX}, {slot*4096}")
        k(f"s_add_u32 s{sT}, s{sXO}, {sg*128}")
        for i in range(4):
            toks.append(k(f"buffer_load_dwordx4 v{vdx[i]}, {X}, s{sT} offen offset:{1024*i} lds"))
        for u in range(3):
            k(f"s_add_u32 m0, s{sLW}, {slot*12288 + u*1024}")
            k(f"s_add_u32 s{sT}, s{sWO}, {sg*64*2688 + u*896}")
            toks.append(k(f"buffer_load_dwordx4 v{vdw}, {W}, s{sT} offen lds"))
        dma[sg] = toks
    for sg in range(5): issue(sg)
    vxa = [va.get() for _ in range(4)]
    vwa = [va.get() for _ in range(4)]
    k(f"""v_and_b32 v{t0}, 31, v0
    v_lshlrev_b32 v{t1}, 7, v{t0}
    v_add_u32 v{t1}, s{sLX}, v{t1}
    v_bfe_u32 v{t0}, v0, 1, 3
    v_lshrrev_b32 v{t2}, 5, v0
    v_xor_b32 v{t0}, v{t0}, v{t2}
    s_lshl_b32 s{sT}, s3, 1
    v_xor_b32 v{t0}, s{sT}, v{t0}""")
    for j in range(4):
        k(f"v_xor_b32 v{t2}, {2*j}, v{t0}")
        k(f"v_lshl_add_u32 v{vxa[j]}, v{t2}, 4, v{t1}")
    k(f"""v_lshrrev_b32 v{t0}, 5, v0
    v_lshlrev_b32 v{t0}, 9, v{t0}
    v_bfe_u32 v{t1}, v0, 2, 2
    v_lshl_add_u32 v{t0}, v{t1}, 6, v{t0}
    v_bfe_u32 v{t1}, v0, 4, 1
    v_lshl_add_u32 v{t0}, v{t1}, 5, v{t0}
    v_and_b32 v{t1}, 3, v0
    v_lshl_add_u32 v{t0}, v{t1}, 3, v{t0}""")
    for j in range(4):
        k(f"s_xor_b32 s{sT}, s3, {j}")
        k(f"s_mul_i32 s{sT}, s{sT}, 3072")
        k(f"v_add_u32 v{vwa[j]}, s{sT}, v{t0}")
    acc = [va.get(16, 4) for _ in range(3)]
    xf = [va.get(4, 4) for _ in range(2)]
    wf = [[va.get(4, 4) for _ in range(3)] for _ in range(2)]
    sm = [va.get() for _ in range(2)]; sq = [va.get() for _ in range(2)]
    cs = [va.get() for _ in range(3)]
    for r in sm + sq + cs: k(f"v_mov_b32 v{r}, 0")
    def reads(n):
        sg, j = divmod(n, 4); slot = sg % 5; b = n & 1
        k(f"ds_read_b128 {vr(xf[b],4)}, v{vxa[j]} offset:{slot*4096}")
        for u in range(3):
            for p in range(2):
                k(f"ds_read_b64_tr_b16 {vr(wf[b][u]+2*p,2)}, v{vwa[j]} offset:{slot*12288 + u*1024 + p*256}")
    wi = va.get(28, 4)
    Lno = k.label("nocs")
    def gate(sg):
        k.after(dma[sg]); k("s_barrier")
        if sg == 2: issue(5)
        if sg == 3: issue(6)
    gate(0); reads(0)
    for n in range(28):
        sg, j = divmod(n, 4); b = n & 1
        if n + 1 < 28:
            if j == 3: gate(sg + 1)
            reads(n + 1)
        c = "0" if n == 0 else None
        mf = [f"{MF32} {vr(acc[0],16)}, {vr(wf[b][0],4)}, {vr(xf[b],4)}, {c or vr(acc[0],16)}",
              f"{MF32} {vr(acc[1],16)}, {vr(wf[b][1],4)}, {vr(xf[b],4)}, {c or vr(acc[1],16)}",
              f"{MF32} {vr(acc[2],16)}, {vr(xf[b],4)}, {vr(wf[b][2],4)}, {c or vr(acc[2],16)}"]
        fill = []
        for i in range(4):
            fill.append(f"v_dot2_f32_bf16 v{sm[i&1]}, v{xf[b]+i}, s{sONE}, v{sm[i&1]}")
            fill.append(f"v_dot2_f32_bf16 v{sq[i&1]}, v{xf[b]+i}, v{xf[b]+i}, v{sq[i&1]}")
        if j == 0:
            for i in range(4):
                for u in range(3):
                    fill.append(f"v_dot2_f32_bf16 v{cs[u]}, v{wf[b][u]+i}, s{sONE}, v{cs[u]}")
        for t in interleave(mf, fill): k(t)
    k(f"s_cmp_ge_u32 s2, 56\ns_cbranch_scc1 {Lno}")
    k(f"""v_lshrrev_b32 v{t0}, 2, v0
    v_mul_u32_u24 v{t0}, 3584, v{t0}
    v_and_b32 v{t1}, 3, v0
    v_lshl_add_u32 v{t0}, v{t1}, 4, v{t0}
    s_mul_i32 s{sT}, s3, {112*3584}
    s_lshl_b32 s{sLO}, s2, 6
    s_add_u32 s{sT}, s{sT}, s{sLO}""")
    for i in range(7):
        k(f"buffer_load_dwordx4 {vr(wi+4*i,4)}, v{t0}, {WI}, s{sT} offen")
        if i < 6: k(f"s_add_u32 s{sT}, s{sT}, {16*3584}")
    ca = va.get(8, 4)
    k(f"s_mov_b32 s{sLO}, 0x3f80\ns_mov_b32 s{sHI}, 0x3f800000")
    for e in range(8): k(f"v_mov_b32 v{ca+e}, 0")
    for i in range(7):
        for e in range(8):
            k(f"v_dot2_f32_bf16 v{ca+e}, v{wi+4*i+e//2}, s{sHI if e&1 else sLO}, v{ca+e}")
    for ctl in ("row_ror:4", "row_ror:8"):
        for e in range(8): dpp_add(k, ca + e, ctl)
    for e in range(8): row_pair_sum(k, ca + e, t1)
    for e in range(8): half_sum(k, ca + e, t1)
    k(f"""v_and_b32 v{t0}, 3, v0
    v_lshlrev_b32 v{t0}, 5, v{t0}
    s_lshl_b32 s{sT}, s3, 7
    s_add_u32 s{sT}, s{sT}, {A_SCR+4096}
    v_add_u32 v{t0}, s{sT}, v{t0}
    ds_write_b128 v{t0}, {vr(ca,4)}
    ds_write_b128 v{t0}, {vr(ca+4,4)} offset:16
    s_waitcnt vmcnt(0) lgkmcnt(0)
    {Lno}:""")
    va.free(ca, 8); va.free(wi, 28)
    zz = va.get(2, 2)
    k(f"""v_mov_b32 v{zz}, -1
    v_lshlrev_b32 v{t0}, 2, v0
    s_lshl_b32 s{sT}, s2, 2
    s_add_u32 s{sT}, s{sT}, s3
    s_lshl_b32 s{sT}, s{sT}, 7
    s_add_u32 s{sT}, s{sT}, {ZS_OFF}
    s_mov_b32 exec_hi, 0
    buffer_store_dword v{zz}, v{t0}, {WS}, s{sT} offen {st}
    s_mov_b32 exec_hi, -1""")
    va.free(zz, 2)
    k(f"v_add_f32 v{sm[0]}, v{sm[0]}, v{sm[1]}\nv_add_f32 v{sq[0]}, v{sq[0]}, v{sq[1]}")
    for r in (sm[0], sq[0], cs[0], cs[1], cs[2]): half_sum(k, r, t1)
    ln_finish(k, sm[0], sq[0], D, t1)
    nm, rs = sm[0], sq[0]
    ad = va.get()
    k(f"""v_and_b32 v{t0}, 31, v0
    v_lshlrev_b32 v{ad}, 2, v{t0}
    v_add_u32 v{ad}, {A_SCR}, v{ad}
    s_mul_i32 s{sT}, s3, 384
    v_add_u32 v{t0}, s{sT}, v{ad}""")
    w = [k(f"ds_write_b32 v{t0}, v{cs[u]} offset:{128*u}") for u in range(3)]
    k(f"""s_mul_i32 s{sT}, s3, {512-384}
    v_add_u32 v{t0}, s{sT}, v{t0}""")
    w.append(k(f"ds_write_b32 v{t0}, v{rs} offset:2048")); w.append(k(f"ds_write_b32 v{t0}, v{nm} offset:{2048+128}"))
    k.after(w); k("s_barrier")
    pp = va.get(12)
    Lno2 = k.label("nocs2")
    k(f"""s_cmp_ge_u32 s2, 56
    s_cbranch_scc1 {Lno2}
    s_cmp_lg_u32 s3, 0
    s_cbranch_scc1 {Lno2}""")
    for ww in range(4): k(f"ds_read_b32 v{pp+ww}, v{ad} offset:{4096+128*ww}")
    k(f"""v_add_f32 v{pp}, v{pp}, v{pp+1}
    v_add_f32 v{pp+2}, v{pp+2}, v{pp+3}
    v_add_f32 v{pp}, v{pp}, v{pp+2}
    v_subrev_u32 v{pp+1}, {A_SCR}, v{ad}
    s_lshl_b32 s{sT}, s2, 7
    s_add_u32 s{sT}, s{sT}, {CS_OFF}
    buffer_store_dword v{pp}, v{pp+1}, {WS}, s{sT} offen {st}
    s_waitcnt vmcnt(0)
    {Lno2}:""")
    for u in range(3):
        for ww in range(4): k(f"ds_read_b32 v{pp+4*u+ww}, v{ad} offset:{384*ww + 128*u}")
    for u in range(3):
        k(f"v_add_f32 v{pp+4*u}, v{pp+4*u}, v{pp+4*u+1}\nv_add_f32 v{pp+4*u+2}, v{pp+4*u+2}, v{pp+4*u+3}")
        k(f"v_add_f32 v{cs[u]}, v{pp+4*u}, v{pp+4*u+2}")
    va.free(pp, 12)
    w = [k(f"ds_write_b32 v{t0}, v{cs[u]} offset:{2048+256+128*u}") for u in range(2)]
    k(f"""v_lshrrev_b32 v{t1}, 5, v0
    v_lshlrev_b32 v{t1}, 4, v{t1}
    s_lshl_b32 s{sT}, s3, 9
    s_add_u32 s{sT}, s{sT}, {A_SCR+2048}
    v_add_u32 v{t1}, s{sT}, v{t1}""")
    tb = [va.get(16, 4) for _ in range(4)]
    k.after(w)
    for a in range(4):
        for i in range(4): k(f"ds_read_b128 {vr(tb[a]+4*i,4)}, v{t1} offset:{128*a + 32*i}")
    rq, nq = va.get(), va.get()
    k(f"v_mul_f32 v{rq}, {f2u(QSCALE):#x}, v{rs}\nv_mul_f32 v{nq}, {f2u(QSCALE):#x}, v{nm}")
    k(f"v_cmp_gt_u32 vcc, 32, v0")
    for r in range(16):
        k(f"v_mul_f32 v{acc[2]+r}, v{tb[0]+r}, v{acc[2]+r}")
        k(f"v_fma_f32 v{acc[2]+r}, v{tb[1]+r}, v{cs[2]}, v{acc[2]+r}")
    for r in range(16):
        k(f"v_mul_f32 v{acc[0]+r}, v{rq}, v{acc[0]+r}")
        k(f"v_mul_f32 v{acc[1]+r}, v{rs}, v{acc[1]+r}")
        k(f"v_fma_f32 v{acc[0]+r}, v{tb[2]+r}, v{nq}, v{acc[0]+r}")
        k(f"v_fma_f32 v{acc[1]+r}, v{tb[3]+r}, v{nm}, v{acc[1]+r}")
    pk = [tb[0], tb[0] + 8, tb[1]]
    for u in range(3):
        for i in range(8): k(f"v_cvt_pk_bf16_f32 v{pk[u]+i}, v{acc[u]+2*i}, v{acc[u]+2*i+1}")
    for u in range(2):
        for i in (6, 7): k(f"v_cndmask_b32 v{pk[u]+i}, 0, v{pk[u]+i}, vcc")
    k(f"""v_and_b32 v{t0}, 31, v0
    v_cmp_eq_u32 vcc, 28, v{t0}
    v_mov_b32 v{t1}, s{sONE}
    v_cndmask_b32 v{t1}, 0, v{t1}, vcc
    v_cmp_gt_u32 vcc, 28, v{t0}""")
    for i in range(8): k(f"v_cndmask_b32 v{pk[2]+i}, v{t1}, v{pk[2]+i}, vcc")
    k(f"""v_lshlrev_b32 v{t0}, 4, v0
    s_lshl_b32 s{sT}, s{sH}, 6
    s_lshl_b32 s{sLO}, s{sRB}, 2
    s_add_u32 s{sT}, s{sT}, s{sLO}
    s_add_u32 s{sT}, s{sT}, s3
    s_lshl_b32 s{sLO}, s{sT}, 11
    s_lshl_b32 s{sHI}, s{sT}, 12
    s_add_u32 s{sHI}, s{sHI}, {KV_OFF}""")
    k(f"buffer_store_dwordx4 {vr(pk[1],4)}, v{t0}, {WS}, s{sHI} offen {st}")
    k(f"buffer_store_dwordx4 {vr(pk[1]+4,4)}, v{t0}, {WS}, s{sHI} offen offset:1024 {st}")
    k(f"buffer_store_dwordx4 {vr(pk[2],4)}, v{t0}, {WS}, s{sHI} offen offset:2048 {st}")
    k(f"buffer_store_dwordx4 {vr(pk[2]+4,4)}, v{t0}, {WS}, s{sHI} offen offset:3072 {st}")
    k(f"buffer_store_dwordx4 {vr(pk[0],4)}, v{t0}, {WS}, s{sLO} offen {st}")
    k(f"buffer_store_dwordx4 {vr(pk[0]+4,4)}, v{t0}, {WS}, s{sLO} offen offset:1024 {st}")
```

```python
from common import *
B_LDS = 49152

def phase_b(k, va, st="", ld="", lds0=0, force_slow=False):
    WS = srd(k, 36, "ws")
    sH, sRB, sT, sKV, sCNT, sU = 44, 45, 46, 47, 48, 49
    l16, t0, t1 = va.get(), va.get(), va.get()
    k(f"""s_and_b32 s{sH}, s2, 15
    s_lshr_b32 s{sRB}, s2, 4
    v_lshlrev_b32 v{l16}, 4, v0
    s_lshl_b32 s{sKV}, s{sH}, 6
    s_lshl_b32 s{sT}, s3, 4
    s_add_u32 s{sKV}, s{sKV}, s{sT}
    s_lshl_b32 s{sKV}, s{sKV}, 12
    s_add_u32 s{sKV}, s{sKV}, {KV_OFF}
    s_lshl_b32 s{sT}, s{sH}, 6
    s_lshl_b32 s{sU}, s{sRB}, 2
    s_add_u32 s{sT}, s{sT}, s{sU}
    s_lshl_b32 s{sT}, s{sT}, 11""")
    NB = 3
    Q = [[va.get(4, 4) for _ in range(2)] for _ in range(4)]
    KV = [[va.get(4, 4) for _ in range(4)] for _ in range(NB)]
    O = [va.get(16, 4) for _ in range(4)]
    Sb = [va.get(16, 4) for _ in range(2)]
    P = [va.get(8, 4) for _ in range(2)]
    def kvload(b):
        r = [f"buffer_load_dwordx4 {vr(KV[b][i],4)}, v{l16}, {WS}, s{sKV} offen offset:{1024*i} {ld}" for i in range(4)]
        return r + [f"s_add_u32 s{sKV}, s{sKV}, 4096"]
    def qload(t):
        k(f"""s_add_u32 s{sU}, s3, {t}
        s_and_b32 s{sU}, s{sU}, 3
        s_lshl_b32 s{sU}, s{sU}, 11
        s_add_u32 s{sU}, s{sU}, s{sT}""")
        for j in range(2): k(f"buffer_load_dwordx4 {vr(Q[t][j],4)}, v{l16}, {WS}, s{sU} offen offset:{1024*j} {ld}")
    for t in kvload(0)[:2]: k(t)
    qload(0); qload(1)
    for t in kvload(0)[2:]: k(t)
    qload(2); qload(3)
    for t in kvload(1): k(t)
    for t in range(4):
        for r in range(16): k(f"v_mov_b32 v{O[t]+r}, 0")
    for r in range(4): k(f"v_mov_b32 v{P[1]+4+r}, 0")
    def qk(u, j):
        kt, t = divmod(u, 4)
        c = "0" if j == 0 else vr(Sb[u & 1], 16)
        return f"{MF32} {vr(Sb[u&1],16)}, {vr(KV[kt%NB][j],4)}, {vr(Q[t][j],4)}, {c}"
    def pv(u, j):
        kt, t = divmod(u, 4)
        return f"{MF32} {vr(O[t],16)}, {vr(KV[kt%NB][2+j],4)}, {vr(P[u&1]+4*j,4)}, {vr(O[t],16)}"
    def step(u, first=False, last=False, extra=()):
        s, p = Sb[u & 1], P[u & 1]
        e = lambda r: f"v_exp_f32 v{s+r}, v{s+r}"
        c = lambda i: f"v_cvt_pk_bf16_f32 v{p+i}, v{s+2*i}, v{s+2*i+1}"
        ex = list(extra)
        seq = []
        if not last: seq.append(qk(u + 1, 0))
        seq += ex[0:2]
        seq += [e(0), e(1), e(2), e(3)]
        if not first: seq.append(pv(u - 1, 1))
        seq += ex[2:4]
        seq += [e(4), c(0), e(5), c(1), e(6), e(7)]
        if not last: seq.append(qk(u + 1, 1))
        seq += ex[4:]
        seq += [e(8), c(2), e(9), c(3), e(10), e(11)]
        seq.append(pv(u, 0))
        seq += [e(12), c(4), e(13), c(5), e(14), e(15), c(6), c(7)]
        for t in seq: k(t)
    k(qk(0, 0)); k(qk(0, 1))
    NT = 16
    def tile(kt, first=False, last=False, load=True):
        for t in range(4):
            u = 4 * kt + t
            step(u, first=(first and t == 0), last=(last and t == 3),
                 extra=(kvload((kt + 2) % NB) if (load and t == 1) else ()))
    tile(0, first=True)
    L = k.label("loop")
    k(f"s_mov_b32 s{sCNT}, 4")
    k(".p2align 6")
    k(f"{L}:")
    m = k.loop_begin()
    for kt in range(1, 4): tile(kt)
    k(f"s_sub_u32 s{sCNT}, s{sCNT}, 1\ns_cmp_lg_u32 s{sCNT}, 0\ns_cbranch_scc1 {L}")
    k.loop_end(m)
    tile(13); tile(14, load=False); tile(15, last=True, load=False)
    k(pv(63, 1))
    ws = []
    for d in (1, 2, 3):
        k(f"""s_add_u32 s{sT}, s3, {d}
        s_and_b32 s{sT}, s{sT}, 3
        s_mul_i32 s{sU}, s{sT}, 12288
        v_add_u32 v{t0}, s{sU}, v{l16}""")
        for i in range(4): ws.append(k(f"ds_write_b128 v{t0}, {vr(O[d]+4*i,4)} offset:{lds0+4096*(d-1)+1024*i}"))
    R = O[0]
    k(f"s_mul_i32 s{sU}, s3, 12288\nv_add_u32 v{t0}, s{sU}, v{l16}")
    k.after(ws); k("s_barrier")
    for d in (1, 2, 3):
        for i in range(4): k(f"ds_read_b128 {vr(O[d]+4*i,4)}, v{t0} offset:{lds0+4096*(d-1)+1024*i}")
    for d in (1, 2, 3):
        for r in range(16): k(f"v_add_f32 v{R+r}, v{R+r}, v{O[d]+r}")
    Lslow, Ldone = k.label("slow"), k.label("norm")
    lsum, mx = O[2], O[2] + 1
    def bcast_l():
        k(f"v_mov_b32 v{lsum}, v{R+12}\nv_mov_b32 v{t1}, v{R+12}")
        k(f"v_permlane32_swap_b32 v{t1}, v{lsum}")
    bcast_l()
    k(f"v_add_f32_e64 v{mx}, abs(v{R}), abs(v{R+1})")
    k(f"v_add_f32_e64 v{t1}, abs(v{R+2}), abs(v{R+3})")
    for r in range(4, 16): k(f"v_add_f32_e64 v{t1 if r&1 else mx}, abs(v{R+r}), v{t1 if r&1 else mx}")
    k(f"""v_add_f32 v{mx}, v{mx}, v{t1}
    s_mov_b32 s{sT}, {f2u(2.0**-32):#x}
    s_mov_b32 s{sU}, {f2u(2.0**48):#x}
    s_mov_b32 s{sCNT}, {f2u(2.0**120):#x}
    v_cmp_le_f32 s[60:61], s{sT}, v{lsum}
    v_cmp_ge_f32 s[62:63], s{sU}, v{lsum}
    v_cmp_ge_f32 vcc, s{sCNT}, v{mx}
    s_and_b64 s[60:61], s[60:61], s[62:63]
    s_and_b64 s[60:61], s[60:61], vcc
    s_cmp_eq_u64 s[60:61], {"0" if force_slow else "-1"}
    s_cbranch_scc1 {Ldone}""")
    slow_path(k, WS, sH, sRB, sT, sU, sKV, sCNT, l16, t0, t1, R, Q, KV, O, Sb[1], P[0], ld)
    bcast_l()
    k(f"{Ldone}:")
    k(f"""v_rcp_f32 v{lsum}, v{lsum}
    v_cmp_gt_u32 vcc, 32, v0
    v_cndmask_b32 v{mx}, 0, v{lsum}, vcc""")
    for r in range(16): k(f"v_mul_f32 v{R+r}, v{lsum if r < 12 else mx}, v{R+r}")
    for i in range(8): k(f"v_cvt_pk_bf16_f32 v{P[0]+i}, v{R+2*i}, v{R+2*i+1}")
    k(f"""s_lshl_b32 s{sT}, s{sRB}, 2
    s_add_u32 s{sT}, s{sT}, s3
    s_lshl_b32 s{sT}, s{sT}, 4
    s_add_u32 s{sT}, s{sT}, s{sH}
    s_lshl_b32 s{sT}, s{sT}, 11
    s_add_u32 s{sT}, s{sT}, {O_OFF}""")
    a = k(f"buffer_store_dwordx4 {vr(P[0],4)}, v{l16}, {WS}, s{sT} offen {st}")
    b = k(f"buffer_store_dwordx4 {vr(P[0]+4,4)}, v{l16}, {WS}, s{sT} offen offset:1024 {st}")
    return [a, b]

def slow_path(k, WS, sH, sRB, sT, sU, sKV, sCNT, l16, t0, t1, R, Q, KV, O, S1, P, ld):
    m, mo, f = O[1], O[1] + 1, O[1] + 2
    k(f"""s_lshl_b32 s{sT}, s{sH}, 6
    s_lshl_b32 s{sKV}, s{sT}, 12
    s_add_u32 s{sKV}, s{sKV}, {KV_OFF}
    v_mov_b32 v{m}, 0xff7fffff
    s_mov_b32 s{sCNT}, 64""")
    for r in range(16): k(f"v_mov_b32 v{R+r}, 0")
    L = k.label("sloop")
    k(f"{L}:")
    mk = k.loop_begin()
    for i in range(4): k(f"buffer_load_dwordx4 {vr(KV[0][i],4)}, v{l16}, {WS}, s{sKV} offen offset:{1024*i} {ld}")
    k(f"s_add_u32 s{sKV}, s{sKV}, 4096")
    k(f"{MF32} {vr(S1,16)}, {vr(KV[0][0],4)}, {vr(Q[0][0],4)}, 0")
    k(f"{MF32} {vr(S1,16)}, {vr(KV[0][1],4)}, {vr(Q[0][1],4)}, {vr(S1,16)}")
    k(f"v_mov_b32 v{mo}, v{m}")
    for r in range(0, 16, 2): k(f"v_max3_f32 v{m}, v{S1+r}, v{S1+r+1}, v{m}")
    k(f"v_mov_b32 v{t1}, v{m}\nv_permlane32_swap_b32 v{m}, v{t1}\nv_max_f32 v{m}, v{m}, v{t1}")
    k(f"v_sub_f32 v{f}, v{mo}, v{m}\nv_exp_f32 v{f}, v{f}")
    for r in range(16): k(f"v_sub_f32 v{S1+r}, v{S1+r}, v{m}")
    for r in range(16): k(f"v_exp_f32 v{S1+r}, v{S1+r}")
    for r in range(16): k(f"v_mul_f32 v{R+r}, v{f}, v{R+r}")
    for i in range(8): k(f"v_cvt_pk_bf16_f32 v{P+i}, v{S1+2*i}, v{S1+2*i+1}")
    k(f"{MF32} {vr(R,16)}, {vr(KV[0][2],4)}, {vr(P,4)}, {vr(R,16)}")
    k(f"{MF32} {vr(R,16)}, {vr(KV[0][3],4)}, {vr(P+4,4)}, {vr(R,16)}")
    k(f"s_sub_u32 s{sCNT}, s{sCNT}, 1\ns_cmp_lg_u32 s{sCNT}, 0\ns_cbranch_scc1 {L}")
    k.loop_end(mk)
    k("s_waitcnt vmcnt(0)")
```

```python
from common import *
import math
C1 = 2 * math.sqrt(2 / math.pi) * math.log2(math.e)
C2 = C1 * 0.044715
sRB, sG = 26, 27
MAP = "rbx"

def decode(k):
    if MAP == "gx":
        k(f"s_and_b32 s{sG}, s2, 7\ns_lshr_b32 s{sRB}, s2, 3")
    elif MAP == "rbx":
        k(f"""s_and_b32 s{sRB}, s2, 7
        s_lshl_b32 s{sRB}, s{sRB}, 2
        s_bfe_u32 s{sG}, s2, 0x20003
        s_add_u32 s{sRB}, s{sRB}, s{sG}
        s_lshr_b32 s{sG}, s2, 5""")
    elif MAP == "mix":
        k(f"""s_bfe_u32 s{sRB}, s2, 0x20001
        s_lshl_b32 s{sRB}, s{sRB}, 3
        s_bfe_u32 s{sG}, s2, 0x30003
        s_add_u32 s{sRB}, s{sRB}, s{sG}
        s_and_b32 s{sG}, s2, 1
        s_lshl_b32 s{sG}, s{sG}, 2
        s_lshr_b32 s46, s2, 6
        s_add_u32 s{sG}, s{sG}, s46""")

def cm_off(k, dst, t, sW):
    k(f"""v_lshrrev_b32 v{dst}, 4, v0
    v_lshlrev_b32 v{dst}, 10, v{dst}
    v_and_b32 v{t}, 15, v0
    v_lshl_add_u32 v{dst}, v{t}, 4, v{dst}
    s_lshl_b32 s46, s{sW}, 8
    v_add_u32 v{dst}, s46, v{dst}""")

W_LDS = 61440 + 8192
def phase_w(k, va, st="", ld=""):
    decode(k)
    k(f"s_cmp_eq_u32 s{sG}, 7\ns_cbranch_scc1 L_{k.name}_end")
    X, WO, WS = srd(k, 28, "x"), srd(k, 32, "wo"), srd(k, 36, "ws")
    sT, sU, sM, sONE = 46, 47, 48, 51
    t0, t1, t2 = va.get(), va.get(), va.get()
    vd = [va.get() for _ in range(4)]
    k(f"""s_mov_b32 s{sONE}, {ONES:#x}
    v_lshrrev_b32 v{t0}, 3, v0
    v_mul_u32_u24 v{t0}, 896, v{t0}
    v_and_b32 v{t1}, 7, v0
    v_lshl_add_u32 v{t2}, v{t1}, 4, v{t0}
    v_lshrrev_b32 v{vd[1]}, 4, v0
    v_lshlrev_b32 v{vd[1]}, 1, v{vd[1]}
    v_xor_b32 v{t1}, v{t1}, v{vd[1]}
    v_lshl_add_u32 v{vd[0]}, v{t1}, 4, v{t0}""")
    for i in range(1, 4): k(f"v_add_u32 v{vd[i]}, {i*(7168-1024)}, v{vd[0]}")
    k(f"""s_mul_i32 s{sT}, s3, {15*7168}
    s_lshl_b32 s{sU}, s{sG}, 7
    s_add_u32 s{sT}, s{sT}, s{sU}
    s_mul_i32 s{sM}, s3, {15*1024}""")
    dm = []
    for i in range(15):
        if i % 4 == 0:
            k(f"s_add_u32 m0, s{sM}, {i*1024}")
            if i: k(f"s_add_u32 s{sT}, s{sT}, {4*7168}")
        dm.append(k(f"buffer_load_dwordx4 v{vd[i&3]}, {WO}, s{sT} offen offset:{1024*(i&3)} lds"))
    k(f"""s_lshl_b32 s{sT}, s{sRB}, 2
    s_add_u32 s{sT}, s{sT}, s3
    s_mul_i32 s{sT}, s{sT}, {16*896}
    s_add_u32 s{sT}, s{sT}, s{sU}
    s_lshl_b32 s{sM}, s3, 11
    s_add_u32 m0, s{sM}, 61440
    v_add_u32 v{t1}, {7168-1024}, v{t2}""")
    dx = [k(f"buffer_load_dwordx4 v{t2}, {X}, s{sT} offen lds"), k(f"buffer_load_dwordx4 v{t1}, {X}, s{sT} offen offset:1024 lds")]
    of = va.get(64, 4); vo = va.get()
    k(f"""v_lshrrev_b32 v{t0}, 5, v0
    v_lshlrev_b32 v{t0}, 10, v{t0}
    v_bfe_u32 v{vo}, v0, 4, 1
    v_lshl_add_u32 v{t0}, v{vo}, 9, v{t0}
    v_and_b32 v{vo}, 15, v0
    v_lshl_add_u32 v{vo}, v{vo}, 4, v{t0}
    s_and_b32 s{sT}, s3, 1
    s_lshl_b32 s{sT}, s{sT}, 8
    v_add_u32 v{vo}, s{sT}, v{vo}
    s_lshl_b32 s{sT}, s{sRB}, 1
    s_lshr_b32 s{sU}, s3, 1
    s_add_u32 s{sT}, s{sT}, s{sU}
    s_lshl_b32 s{sT}, s{sT}, 15
    s_add_u32 s{sT}, s{sT}, {O_OFF}""")
    for hd in range(16):
        k(f"buffer_load_dwordx4 {vr(of+4*hd,4)}, v{vo}, {WS}, s{sT} offen offset:{2048*(hd&1)} {ld}")
        if hd & 1 and hd < 15: k(f"s_add_u32 s{sT}, s{sT}, 4096")
    wa = [[va.get() for _ in range(4)] for _ in range(2)]
    k(f"""v_lshrrev_b32 v{t0}, 5, v0
    v_lshlrev_b32 v{t0}, 2, v{t0}
    v_bfe_u32 v{t1}, v0, 4, 1
    v_add_u32 v{t0}, v{t0}, v{t1}
    v_lshlrev_b32 v{t0}, 2, v{t0}
    v_bfe_u32 v{t2}, v0, 2, 2
    v_add_u32 v{t0}, v{t0}, v{t2}
    v_lshlrev_b32 v{t0}, 7, v{t0}
    v_and_b32 v{t2}, 3, v0
    v_lshl_add_u32 v{t0}, v{t2}, 3, v{t0}
    v_bfe_u32 v{t2}, v0, 3, 2""")
    for par in range(2):
        for i in range(4):
            k(f"v_xor_b32 v{t1}, {i ^ (2*par)}, v{t2}")
            k(f"v_lshl_add_u32 v{wa[par][i]}, v{t1}, 5, v{t0}")
    acc = va.get(16, 4); NB = 8
    wf = [va.get(4, 4) for _ in range(NB)]
    xr = va.get(8, 2)
    def rd(n):
        hd, i = divmod(n, 4)
        for p in range(2): k(f"ds_read_b64_tr_b16 {vr(wf[n%NB]+2*p,2)}, v{wa[hd&1][i]} offset:{hd*3584+p*1024}")
    k(f"""v_and_b32 v{t0}, 15, v0
    v_lshlrev_b32 v{t0}, 7, v{t0}
    v_lshrrev_b32 v{t1}, 4, v0
    v_lshl_add_u32 v{t0}, v{t1}, 3, v{t0}
    v_add_u32 v{t0}, s{sM}, v{t0}""")
    k.after(dm + dx); k("s_barrier")
    LA = 6
    for n in range(LA): rd(n)
    for n in range(64):
        hd, i = divmod(n, 4)
        if n + LA < 64: rd(n + LA)
        if n == 60:
            for j in range(4): k(f"ds_read_b64 {vr(xr+2*j,2)}, v{t0} offset:{61440+32*j}")
        k(f"{MF16} {vr(acc+4*i,4)}, {vr(wf[n%NB],4)}, {vr(of+4*hd,4)}, {'0' if hd == 0 else vr(acc+4*i,4)}")
    pk = va.get(8, 4); sm, sq = va.get(2, 2), None
    sq = sm + 1
    vh = va.get(); cm_off(k, vh, t1, 3)
    for j in range(8):
        k(f"v_lshlrev_b32 v{t0}, 16, v{xr+j}\nv_and_b32 v{t1}, 0xffff0000, v{xr+j}")
        k(f"v_add_f32 v{acc+2*j}, v{acc+2*j}, v{t0}\nv_add_f32 v{acc+2*j+1}, v{acc+2*j+1}, v{t1}")
        k(f"v_cvt_pk_bf16_f32 v{pk+j}, v{acc+2*j}, v{acc+2*j+1}")
    k(f"""s_mul_i32 s{sT}, s{sRB}, 57344
    s_lshl_b32 s{sU}, s{sG}, 13
    s_add_u32 s{sT}, s{sT}, s{sU}
    s_add_u32 s{sT}, s{sT}, {H_OFF}
    s_add_u32 s{sU}, s{sT}, 4096""")
    o = [k(f"buffer_store_dwordx4 {vr(pk,4)}, v{vh}, {WS}, s{sT} offen {st}"),
         k(f"buffer_store_dwordx4 {vr(pk+4,4)}, v{vh}, {WS}, s{sU} offen {st}")]
    k(f"v_mov_b32 v{sm}, 0\nv_mov_b32 v{sq}, 0")
    for j in range(8):
        k(f"v_dot2_f32_bf16 v{sm}, v{pk+j}, s{sONE}, v{sm}\nv_dot2_f32_bf16 v{sq}, v{pk+j}, v{pk+j}, v{sq}")
    for r, t in ((sm, t0), (sq, t1)): row_pair_sum(k, r, t)
    for r, t in ((sm, t0), (sq, t1)): half_sum(k, r, t)
    k(f"""v_lshlrev_b32 v{t0}, 6, v0
    s_lshl_b32 s{sT}, s{sRB}, 2
    s_add_u32 s{sT}, s{sT}, s3
    s_lshl_b32 s{sT}, s{sT}, 10
    s_lshl_b32 s{sU}, s{sG}, 3
    s_add_u32 s{sT}, s{sT}, s{sU}
    s_add_u32 s{sT}, s{sT}, {HS_OFF}
    s_mov_b64 exec, 0xffff""")
    o.append(k(f"buffer_store_dwordx2 {vr(sm,2)}, v{t0}, {WS}, s{sT} offen {st}"))
    k("s_mov_b64 exec, -1")
    return o

def gelu_pk(k, regs, tmp, cc):
    n = len(tmp)
    for b in range(0, len(regs), n):
        grp = list(zip(regs[b:b + n], tmp))
        for x, t in grp: k(f"v_pk_mul_f32 {vr(t,2)}, {vr(x,2)}, {vr(x,2)}")
        for x, t in grp: k(f"v_pk_fma_f32 {vr(t,2)}, {vr(t,2)}, {cc[0]}, {cc[1]}")
        for x, t in grp: k(f"v_pk_mul_f32 {vr(t,2)}, {vr(t,2)}, {vr(x,2)}")
        for x, t in grp: k(f"v_exp_f32 v{t}, v{t}\nv_exp_f32 v{t+1}, v{t+1}")
        for x, t in grp: k(f"v_pk_add_f32 {vr(t,2)}, {vr(t,2)}, 1.0 op_sel_hi:[1,0]")
        for x, t in grp: k(f"v_rcp_f32 v{t}, v{t}\nv_rcp_f32 v{t+1}, v{t+1}")
        for x, t in grp: k(f"v_pk_mul_f32 {vr(x,2)}, {vr(x,2)}, {vr(t,2)}")

def quad_stats(k, d, t, n):
    k(f"v_add_f32 v{d}, v{d}, v{d+2}\nv_add_f32 v{d+1}, v{d+1}, v{d+3}")
    for ctl in ("quad_perm:[1,0,3,2]", "quad_perm:[2,3,0,1]"):
        dpp_add(k, d, ctl); dpp_add(k, d + 1, ctl)
    ln_finish(k, d, d + 1, n, t)

C_R1 = 100352
C_LDS = C_R1 + 8 * 7168
def phase_c(k, va, st="", ld=""):
    decode(k)
    WI, WS = srd(k, 32, "win"), srd(k, 36, "ws")
    sT, sU, sM2, sM1, sWO, sH, sP = 46, 47, 48, 49, 50, 51, 52
    t0, t1, t2 = va.get(), va.get(), va.get()
    vd = [va.get() for _ in range(4)]
    k(f"s_and_b32 s{sT}, s3, 1\ns_mul_i32 s{sU}, s{sT}, 192")
    for i in range(4):
        k(f"""v_add_u32 v{t0}, s{sU}, v0
        v_add_u32 v{t0}, {64*i}, v{t0}
        v_mul_u32_u24 v{t1}, 4682, v{t0}
        v_lshrrev_b32 v{t1}, 16, v{t1}
        v_mul_u32_u24 v{t2}, {3584-224}, v{t1}
        v_lshl_add_u32 v{vd[i]}, v{t0}, 4, v{t2}""")
        if i: k(f"v_subrev_u32 v{vd[i]}, {1024*i}, v{vd[i]}")
    k(f"""s_mul_i32 s{sU}, s{sT}, 3072
    s_lshr_b32 s{sT}, s3, 1
    s_mul_i32 s{sM2}, s{sT}, {7*7168}
    s_add_u32 s{sM2}, s{sM2}, s{sU}
    s_mul_i32 s{sM1}, s{sT}, {4*7168}
    s_add_u32 s{sM1}, s{sM1}, s{sU}
    s_add_u32 s{sM1}, s{sM1}, {C_R1}
    s_mul_i32 s{sWO}, s{sT}, {7*32*3584}
    s_mul_i32 s{sU}, s{sG}, 224
    s_add_u32 s{sWO}, s{sWO}, s{sU}""")
    def wdma(half, q):
        if half == 0: k(f"s_add_u32 m0, s{sM2}, {q*7168}")
        elif q < 4: k(f"s_add_u32 m0, s{sM1}, {q*7168}")
        else: k(f"s_add_u32 m0, s{sM2}, {(q-4)*7168}")
        k(f"s_add_u32 s{sT}, s{sWO}, {q*32*3584 + (FH*2 if half == 0 else 0)}")
        return [k(f"buffer_load_dwordx4 v{vd[i]}, {WI}, s{sT} offen offset:{1024*i} lds") for i in range(4)]
    vh = [va.get(), va.get()]
    cm_off(k, vh[0], t0, 3)
    k(f"""v_xor_b32 v{vh[1]}, 256, v{vh[0]}
    s_and_b32 s{sT}, s3, 1
    s_mul_i32 s{sH}, s{sT}, {7*4096}
    s_mul_i32 s{sT}, s{sRB}, 57344
    s_add_u32 s{sH}, s{sH}, s{sT}
    s_add_u32 s{sH}, s{sH}, {H_OFF}""")
    hf = [[va.get(4, 4) for _ in range(2)] for _ in range(7)]
    dm = {}
    for q in range(7):
        dm[0, q] = wdma(0, q)
        for sl in range(2): k(f"buffer_load_dwordx4 {vr(hf[q][sl],4)}, v{vh[sl]}, {WS}, s{sH} offen {ld}")
        if q < 6: k(f"s_add_u32 s{sH}, s{sH}, 4096")
    hs = va.get(4, 4); l16 = va.get()
    cs2 = va.get(8, 2); cs1 = va.get(28, 4)
    k(f"""v_lshlrev_b32 v{l16}, 4, v0
    s_lshl_b32 s{sP}, s{sRB}, 2
    s_add_u32 s{sP}, s{sP}, s3
    s_lshl_b32 s{sP}, s{sP}, 10
    s_add_u32 s{sT}, s{sP}, {HS_OFF}
    buffer_load_dwordx4 {vr(hs,4)}, v{l16}, {WS}, s{sT} offen {ld}
    s_mul_i32 s{sT}, s{sG}, 448
    s_add_u32 s{sT}, s{sT}, {CS_OFF}
    s_add_u32 s{sU}, s{sT}, {FH*4}
    v_and_b32 v{t0}, 15, v0
    v_lshlrev_b32 v{t0}, 2, v{t0}
    v_lshrrev_b32 v{t1}, 4, v0
    v_lshlrev_b32 v{t1}, 4, v{t1}""")
    for i in range(7): k(f"buffer_load_dword v{cs2+i}, v{t0}, {WS}, s{sU} offen offset:{64*i} {ld}")
    for i in range(7): k(f"buffer_load_dwordx4 {vr(cs1+4*i,4)}, v{t1}, {WS}, s{sT} offen offset:{64*i} {ld}")
    for q in range(4): dm[1, q] = wdma(1, q)
    a2, a1 = va.get(), va.get()
    k(f"""v_lshrrev_b32 v{t0}, 2, v0
    v_mul_u32_u24 v{t0}, 224, v{t0}
    v_and_b32 v{t1}, 3, v0
    v_lshl_add_u32 v{t0}, v{t1}, 3, v{t0}
    s_and_b32 s{sT}, s3, 1
    s_mul_i32 s{sU}, s{sT}, {7*7168}
    v_add_u32 v{a2}, s{sU}, v{t0}
    s_mul_i32 s{sU}, s{sT}, {4*7168}
    s_add_u32 s{sU}, s{sU}, {C_R1}
    v_add_u32 v{a1}, s{sU}, v{t0}""")
    NB, LA = 8, 6
    wf = [va.get(4, 4) for _ in range(NB)]
    A2, AX, A1 = va.get(28, 4), va.get(28, 4), va.get(28, 4)
    def gemm(half, own):
        def rd(n):
            q, i = divmod(n, 7)
            if i == 0:
                if half == 0 or q in (0, 4):
                    toks = dm[0, q] if half == 0 else sum((dm[1, j] for j in (range(4) if q == 0 else range(4, 7))), [])
                    k.after(toks); k("s_barrier")
                    if half == 0 and q == 4:
                        for j in range(4, 7): dm[1, j] = wdma(1, j)
            if half == 0: ad, off = a2, q * 7168
            elif q < 4: ad, off = a1, q * 7168
            else: ad, off = a2, (q - 4) * 7168
            for p in range(2): k(f"ds_read_b64_tr_b16 {vr(wf[n%NB]+2*p,2)}, v{ad} offset:{off+p*3584+i*32}")
        for n in range(LA): rd(n)
        for n in range(49):
            q, i = divmod(n, 7)
            if n + LA < 49: rd(n + LA)
            for sl, acc in ((0, own), (1, AX)):
                c = "0" if q == 0 else vr(acc + 4 * i, 4)
                if half == 0: k(f"{MF16} {vr(acc+4*i,4)}, {vr(hf[q][sl],4)}, {vr(wf[n%NB],4)}, {c}")
                else: k(f"{MF16} {vr(acc+4*i,4)}, {vr(wf[n%NB],4)}, {vr(hf[q][sl],4)}, {c}")
        base = (3 if half == 0 else 5) * 7168
        k(f"""s_and_b32 s{sT}, s3, 1
        s_lshr_b32 s{sU}, s3, 1
        s_mul_i32 s{sU}, s{sU}, 7
        s_add_u32 s{sU}, s{sU}, s{sT}
        s_mul_i32 s{sU}, s{sU}, 7168
        v_add_u32 v{t0}, s{sU}, v{l16}
        s_mul_i32 s{sT}, s{sT}, {2*7168}
        s_sub_u32 s{sU}, s{sU}, s{sT}
        s_add_u32 s{sU}, s{sU}, 7168
        v_add_u32 v{t1}, s{sU}, v{l16}""")
        w = [k(f"ds_write_b128 v{t0}, {vr(AX+4*i,4)} offset:{base+1024*i}") for i in range(7)]
        k.after(w); k("s_barrier")
        for i in range(7): k(f"ds_read_b128 {vr(AX+4*i,4)}, v{t1} offset:{base+1024*i}")
        for j in range(14): k(f"v_pk_add_f32 {vr(own+2*j,2)}, {vr(own+2*j,2)}, {vr(AX+2*j,2)}")
    gemm(0, A2)
    k(f"""v_and_b32 v{t0}, 3, v0
    v_cmp_ne_u32 vcc, 3, v{t0}
    v_cndmask_b32 v{hs+2}, 0, v{hs+2}, vcc
    v_cndmask_b32 v{hs+3}, 0, v{hs+3}, vcc""")
    quad_stats(k, hs, t0, D)
    nmr, rsr = va.get(4, 2), va.get(4, 2)
    lanest = va.get(2, 2)
    def by_row(src):
        for r in range(4):
            k(f"v_mov_b32_dpp v{nmr+r}, v{src} row_newbcast:{4*r} row_mask:0xf bank_mask:0xf")
            k(f"v_mov_b32_dpp v{rsr+r}, v{src+1} row_newbcast:{4*r} row_mask:0xf bank_mask:0xf")
    by_row(hs)
    k(f"""v_and_b32 v{t0}, 15, v0
    v_lshlrev_b32 v{t0}, 4, v{t0}
    ds_bpermute_b32 v{lanest}, v{t0}, v{hs}
    ds_bpermute_b32 v{lanest+1}, v{t0}, v{hs+1}
    s_mov_b32 s54, {f2u(-C2):#x}
    s_mov_b32 s55, {f2u(-C2):#x}""")
    c1 = va.get(2, 2)
    k(f"v_mov_b32 v{c1}, {f2u(-C1):#x}\nv_mov_b32 v{c1+1}, {f2u(-C1):#x}")
    cc = ("s[54:55]", vr(c1, 2))
    tmp = [AX + 2 * j for j in range(7)]
    for i in range(7):
        sel = "op_sel:[0,1] op_sel_hi:[1,1]" if i & 1 else "op_sel_hi:[1,0]"
        for h2 in range(2):
            k(f"v_pk_mul_f32 {vr(AX+4*i+2*h2,2)}, {vr(nmr+2*h2,2)}, {vr((cs2+i)&~1,2)} {sel}")
    for i in range(7):
        for h2 in range(2):
            k(f"v_pk_fma_f32 {vr(A2+4*i+2*h2,2)}, {vr(A2+4*i+2*h2,2)}, {vr(rsr+2*h2,2)}, {vr(AX+4*i+2*h2,2)}")
    gelu_pk(k, [A2 + 2 * j for j in range(14)], tmp, cc)
    zs, zq = AX, AX + 4
    for h2 in range(2):
        k(f"v_pk_add_f32 {vr(zs+2*h2,2)}, {vr(A2+2*h2,2)}, {vr(A2+4+2*h2,2)}")
        k(f"v_pk_mul_f32 {vr(zq+2*h2,2)}, {vr(A2+2*h2,2)}, {vr(A2+2*h2,2)}")
    for i in range(1, 7):
        for h2 in range(2):
            if i > 1: k(f"v_pk_add_f32 {vr(zs+2*h2,2)}, {vr(zs+2*h2,2)}, {vr(A2+4*i+2*h2,2)}")
            k(f"v_pk_fma_f32 {vr(zq+2*h2,2)}, {vr(A2+4*i+2*h2,2)}, {vr(A2+4*i+2*h2,2)}, {vr(zq+2*h2,2)}")
    for ctl in ("row_ror:8", "row_ror:4", "row_ror:2", "row_ror:1"):
        for e in range(8): dpp_add(k, zs + e, ctl)
    pb = AX + 8
    k(f"v_and_b32 v{t0}, 15, v0\nv_mov_b32 v{pb}, v{zs}\nv_mov_b32 v{pb+1}, v{zq}")
    for r in range(1, 4):
        k(f"v_cmp_eq_u32 vcc, {r}, v{t0}\nv_cndmask_b32 v{pb}, v{pb}, v{zs+r}, vcc\nv_cndmask_b32 v{pb+1}, v{pb+1}, v{zq+r}, vcc")
    k(f"""v_lshrrev_b32 v{t1}, 4, v0
    v_lshl_add_u32 v{t0}, v{t1}, 2, v{t0}
    v_lshlrev_b32 v{t0}, 6, v{t0}
    s_add_u32 s{sP}, s{sP}, {ZS_OFF}
    s_lshl_b32 s{sT}, s{sG}, 3
    s_add_u32 s{sT}, s{sT}, s{sP}
    s_mov_b32 exec_lo, 0x000f000f
    s_mov_b32 exec_hi, 0x000f000f
    buffer_store_dwordx2 {vr(pb,2)}, v{t0}, {WS}, s{sT} offen sc1
    s_mov_b64 exec, -1""")
    gemm(1, A1)
    for j in range(14):
        k(f"v_pk_mul_f32 {vr(cs1+2*j,2)}, {vr(cs1+2*j,2)}, {vr(lanest,2)} op_sel_hi:[1,0]")
    for j in range(14):
        k(f"v_pk_fma_f32 {vr(A1+2*j,2)}, {vr(A1+2*j,2)}, {vr(lanest,2)}, {vr(cs1+2*j,2)} op_sel:[0,1,0] op_sel_hi:[1,1,1]")
    gelu_pk(k, [A1 + 2 * j for j in range(14)], tmp, cc)
    z1 = cs1
    for j in range(14): k(f"v_cvt_pk_bf16_f32 v{z1+j}, v{A1+2*j}, v{A1+2*j+1}")
    k(f"""s_lshl_b32 s{sT}, s{sRB}, 3
    s_add_u32 s{sT}, s{sT}, s{sG}
    s_lshl_b32 s{sT}, s{sT}, 2
    s_add_u32 s{sT}, s{sT}, s3
    s_lshl_b32 s{sT}, s{sT}, 12
    s_add_u32 s{sT}, s{sT}, {Z1_OFF}""")
    o = [k(f"buffer_store_dwordx4 {vr(z1+4*j,4)}, v{l16}, {WS}, s{sT} offen offset:{1024*j} {st}") for j in range(4)]
    L, Ld = k.label("zpoll"), k.label("zdone")
    k(f"s_mov_b32 s{sT}, 0\n{L}:")
    mk = k.loop_begin()
    k(f"""buffer_load_dwordx4 {vr(hs,4)}, v{l16}, {WS}, s{sP} offen sc1
    s_add_u32 s{sT}, s{sT}, 1
    v_max3_u32 v{t0}, v{hs}, v{hs+1}, v{hs+2}
    v_max_u32 v{t0}, v{t0}, v{hs+3}
    v_cmp_eq_u32 vcc, -1, v{t0}
    s_cmp_gt_u32 s{sT}, 0x40000
    s_cbranch_scc1 {Ld}
    s_cbranch_vccnz {L}""")
    k.loop_end(mk)
    k(f"{Ld}:")
    quad_stats(k, hs, t0, FH)
    by_row(hs)
    for i in range(7):
        for h2 in range(2):
            k(f"v_pk_fma_f32 {vr(A2+4*i+2*h2,2)}, {vr(A2+4*i+2*h2,2)}, {vr(rsr+2*h2,2)}, {vr(nmr+2*h2,2)}")
    pk = AX
    for j in range(14): k(f"v_cvt_pk_bf16_f32 v{pk+j}, v{A2+2*j}, v{A2+2*j+1}")
    k(f"""v_bfe_u32 v{t0}, v0, 4, 1
    v_lshlrev_b32 v{t0}, 10, v{t0}
    v_lshrrev_b32 v{t1}, 5, v0
    v_lshl_add_u32 v{t0}, v{t1}, 8, v{t0}
    v_and_b32 v{t1}, 15, v0
    v_lshl_add_u32 v{t0}, v{t1}, 4, v{t0}
    s_lshl_b32 s{sT}, s{sG}, 6
    s_lshl_b32 s{sU}, s{sRB}, 1
    s_add_u32 s{sT}, s{sT}, s{sU}
    s_lshr_b32 s{sU}, s3, 1
    s_add_u32 s{sT}, s{sT}, s{sU}
    s_mul_i32 s{sT}, s{sT}, 7168
    s_and_b32 s{sU}, s3, 1
    s_lshl_b32 s{sU}, s{sU}, 9
    s_add_u32 s{sT}, s{sT}, s{sU}
    s_add_u32 s{sT}, s{sT}, {Z2_OFF}
    s_add_u32 s{sU}, s{sT}, 4096""")
    for j in range(4):
        for e in range(2): k(f"v_permlane16_swap_b32 v{pk+4*j+e}, v{pk+4*j+2+e}")
    for j in range(4):
        if j == 3: k("s_mov_b32 exec_lo, 0xffff\ns_mov_b32 exec_hi, 0xffff")
        o.append(k(f"buffer_store_dwordx4 {vr(pk+4*j,4)}, v{t0}, {WS}, s{sT if j < 2 else sU} offen offset:{2048*(j&1)} {st}"))
    k("s_mov_b64 exec, -1")
    return o

D_LDS = 131072
def phase_d(k, va, st="", ld=""):
    decode(k)
    SP, BS, WS = srd(k, 28, "wsp"), srd(k, 32, "bsp"), srd(k, 36, "ws")
    sT, sU, sZ, sL = 46, 47, 48, 49
    sJ = [50, 51, 52, 53]
    t0, t1, t2 = va.get(), va.get(), va.get()
    l16, l16b = va.get(), va.get()
    vd = [va.get(), va.get()]
    k(f"""v_lshlrev_b32 v{l16}, 4, v0
    v_add_u32 v{l16b}, 4096, v{l16}
    v_lshrrev_b32 v{t0}, 3, v0
    v_lshlrev_b32 v{t0}, 12, v{t0}
    v_and_b32 v{t1}, 7, v0
    v_lshrrev_b32 v{t2}, 4, v0
    v_xor_b32 v{t1}, v{t1}, v{t2}
    v_lshl_add_u32 v{vd[0]}, v{t1}, 4, v{t0}
    v_xor_b32 v{t1}, 4, v{t1}
    v_lshl_add_u32 v{vd[1]}, v{t1}, 4, v{t0}
    v_add_u32 v{vd[1]}, {8*4096-1024}, v{vd[1]}
    s_lshl_b32 s{sL}, s3, 15
    s_lshl_b32 s{sU}, s{sRB}, 18
    s_lshl_b32 s{sT}, s3, 10
    s_add_u32 s{sU}, s{sU}, s{sT}""")
    for jj in range(4):
        k(f"""s_add_u32 s{sT}, s3, {jj}
        s_and_b32 s{sT}, s{sT}, 3
        s_lshl_b32 s{sT}, s{sT}, 16
        s_add_u32 s{sJ[jj]}, s{sT}, s{sU}""")
    k(f"""s_lshl_b32 s{sZ}, s{sG}, 6
    s_lshl_b32 s{sT}, s3, 4
    s_add_u32 s{sZ}, s{sZ}, s{sT}
    s_mul_i32 s{sZ}, s{sZ}, 7168
    s_add_u32 s{sZ}, s{sZ}, {Z2_OFF}""")
    NZ = 3
    zf = [va.get(28, 4) for _ in range(NZ)]
    bf = [va.get(16, 4) for _ in range(2)]
    acc = [va.get(28, 4) for _ in range(4)]
    dm = {}
    def spdma(m):
        r = []
        for jj in range(4):
            r.append(f"s_add_u32 m0, s{sL}, {(m&3)*8192 + jj*2048}")
            for i in range(2): r.append(f"buffer_load_dwordx4 v{vd[i]}, {SP}, s{sJ[jj]} offen offset:{1024*i} lds")
            r.append(f"s_add_u32 s{sJ[jj]}, s{sJ[jj]}, 128")
        return r
    def zload(n):
        r = [f"buffer_load_dwordx4 {vr(zf[n%NZ]+4*i,4)}, v{l16 if i < 4 else l16b}, {WS}, s{sZ} offen offset:{1024*(i&3)} {ld}" for i in range(7)]
        return r + [f"s_add_u32 s{sZ}, s{sZ}, 7168"]
    def emit(lst, m=None):
        for t in lst:
            if isinstance(t, tuple): k.after(dm[t[0]]); continue
            i = k(t)
            if i.cls == "dma": dm.setdefault(cur[0], []).append(i)
    cur = [0]
    emit(spdma(0)); emit(zload(0)); cur[0] = 1; emit(spdma(1)); emit(zload(1)); cur[0] = 2; emit(spdma(2))
    ba = [va.get(), va.get()]
    k(f"""v_and_b32 v{t0}, 15, v0
    v_lshlrev_b32 v{t0}, 7, v{t0}
    v_add_u32 v{t0}, s{sL}, v{t0}
    v_bfe_u32 v{t1}, v0, 1, 3
    v_lshrrev_b32 v{t2}, 4, v0
    v_xor_b32 v{t1}, v{t1}, v{t2}
    v_lshl_add_u32 v{ba[0]}, v{t1}, 4, v{t0}
    v_xor_b32 v{t1}, 4, v{t1}
    v_lshl_add_u32 v{ba[1]}, v{t1}, 4, v{t0}""")
    def bread(n):
        r = [(n // 2,)] if n % 2 == 0 else []
        return r + [f"ds_read_b128 {vr(bf[n&1]+4*jj,4)}, v{ba[n&1]} offset:{((n//2)&3)*8192 + jj*2048}" for jj in range(4)]
    emit(bread(0))
    z1 = None
    for n in range(16):
        mf = [f"{MF16} {vr(acc[jj]+4*i,4)}, {vr(zf[n%NZ]+4*i,4)}, {vr(bf[n&1]+4*jj,4)}, {'0' if n == 0 else vr(acc[jj]+4*i,4)}"
              for i in range(7) for jj in range(4)]
        fill = []
        if n + 1 < 16: fill += bread(n + 1)
        if n + 2 < 16: fill += zload(n + 2)
        if n % 2 == 0 and n // 2 + 3 < 8:
            cur[0] = n // 2 + 3; fill += spdma(n // 2 + 3)
        emit(interleave(mf, fill))
        if n == 13:
            z1 = zf[(n + 3) % NZ]; bb = t2
            k(f"""s_lshl_b32 s{sT}, s{sRB}, 3
            s_add_u32 s{sT}, s{sT}, s{sG}
            s_lshl_b32 s{sT}, s{sT}, 2
            s_add_u32 s{sT}, s{sT}, s3
            s_lshl_b32 s{sT}, s{sT}, 12
            s_add_u32 s{sT}, s{sT}, {Z1_OFF}""")
            for j in range(4): k(f"buffer_load_dwordx4 {vr(z1+4*j,4)}, v{l16}, {WS}, s{sT} offen offset:{1024*j} {ld}")
            k(f"""v_and_b32 v{t0}, 15, v0
            v_lshlrev_b32 v{t0}, 1, v{t0}
            s_lshl_b32 s{sT}, s{sRB}, 2
            s_add_u32 s{sT}, s{sT}, s3
            s_lshl_b32 s{sT}, s{sT}, 5
            buffer_load_ushort v{bb}, v{t0}, {BS}, s{sT} offen""")
    k(f"v_add_u32 v{t0}, s{sL}, v{l16}")
    w = []
    for jj in (1, 2, 3):
        for i in range(7): w.append(k(f"ds_write_b128 v{t0}, {vr(acc[jj]+4*i,4)} offset:{(jj-1)*7168+1024*i}"))
    ra = [ba[0], ba[1], t1]
    for jj in (1, 2, 3):
        k(f"""s_sub_u32 s{sT}, s3, {jj}
        s_and_b32 s{sT}, s{sT}, 3
        s_lshl_b32 s{sT}, s{sT}, 15
        v_add_u32 v{ra[jj-1]}, s{sT}, v{l16}""")
    k.after(w); k("s_barrier")
    for jj in (1, 2, 3):
        for i in range(7): k(f"ds_read_b128 {vr(acc[jj]+4*i,4)}, v{ra[jj-1]} offset:{(jj-1)*7168+1024*i}")
    A = acc[0]
    bp = bf[0]
    k(f"v_lshlrev_b32 v{bp}, 16, v{bb}")
    for j in range(14): k(f"v_pk_add_f32 {vr(A+2*j,2)}, {vr(A+2*j,2)}, {vr(bp,2)} op_sel_hi:[1,0]")
    for jj in (1, 2, 3):
        for j in range(14): k(f"v_pk_add_f32 {vr(A+2*j,2)}, {vr(A+2*j,2)}, {vr(acc[jj]+2*j,2)}")
    zu = acc[1]; pk = acc[2]
    for j in range(14): k(f"v_lshlrev_b32 v{zu+2*j}, 16, v{z1+j}\nv_and_b32 v{zu+2*j+1}, 0xffff0000, v{z1+j}")
    for j in range(14): k(f"v_pk_mul_f32 {vr(A+2*j,2)}, {vr(A+2*j,2)}, {vr(zu+2*j,2)}")
    for j in range(14): k(f"v_cvt_pk_bf16_f32 v{pk+j}, v{A+2*j}, v{A+2*j+1}")
    k(f"""v_bfe_u32 v{t0}, v0, 4, 1
    v_lshlrev_b32 v{t0}, 11, v{t0}
    v_lshrrev_b32 v{t1}, 5, v0
    v_lshl_add_u32 v{t0}, v{t1}, 10, v{t0}
    v_and_b32 v{t1}, 15, v0
    v_lshl_add_u32 v{t0}, v{t1}, 4, v{t0}
    s_mul_i32 s{sT}, s{sRB}, 114688
    s_mul_i32 s{sU}, s{sG}, 14336
    s_add_u32 s{sT}, s{sT}, s{sU}
    s_lshl_b32 s{sU}, s3, 8
    s_add_u32 s{sT}, s{sT}, s{sU}
    s_add_u32 s{sT}, s{sT}, {U_OFF}""")
    for j in range(4):
        for e in range(2): k(f"v_permlane16_swap_b32 v{pk+4*j+e}, v{pk+4*j+2+e}")
    o = []
    for j in range(4):
        if j == 3: k("s_mov_b32 exec_lo, 0xffff\ns_mov_b32 exec_hi, 0xffff")
        o.append(k(f"buffer_store_dwordx4 {vr(pk+4*j,4)}, v{t0}, {WS}, s{sT} offen {st}"))
        if j < 3: k(f"s_add_u32 s{sT}, s{sT}, 4096")
    k("s_mov_b64 exec, -1")
    return o

E_LDS = 114688
def phase_e(k, va, st="", ld=""):
    decode(k)
    k(f"s_cmp_eq_u32 s{sG}, 7\ns_cbranch_scc1 L_{k.name}_end")
    WO, OUT, WS = srd(k, 28, "wout"), srd(k, 32, "out"), srd(k, 36, "ws")
    sT, sU, sM, sA = 46, 47, 48, 49
    t0, t1, t2 = va.get(), va.get(), va.get()
    vd, vu = va.get(), va.get()
    k(f"""v_lshrrev_b32 v{t0}, 3, v0
    v_mul_u32_u24 v{t0}, 896, v{t0}
    v_and_b32 v{t1}, 7, v0
    v_bfe_u32 v{t2}, v0, 4, 1
    v_lshlrev_b32 v{t2}, 1, v{t2}
    v_xor_b32 v{t1}, v{t1}, v{t2}
    s_and_b32 s{sT}, s3, 1
    s_lshl_b32 s{sT}, s{sT}, 2
    v_xor_b32 v{t1}, s{sT}, v{t1}
    v_lshl_add_u32 v{vd}, v{t1}, 4, v{t0}
    s_mul_i32 s{sT}, s3, 7168
    s_lshl_b32 s{sU}, s{sG}, 7
    s_add_u32 s{sT}, s{sT}, s{sU}
    s_lshl_b32 s{sM}, s3, 10
    s_mul_i32 s{sA}, s{sRB}, 114688
    s_add_u32 s{sA}, s{sA}, {U_OFF}""")
    cm_off2 = lambda: None
    k(f"""v_lshrrev_b32 v{vu}, 4, v0
    v_lshlrev_b32 v{vu}, 10, v{vu}
    v_and_b32 v{t0}, 15, v0
    v_lshl_add_u32 v{vu}, v{t0}, 4, v{vu}
    s_lshl_b32 s{sU}, s3, 8
    v_add_u32 v{vu}, s{sU}, v{vu}""")
    uf = va.get(112, 4); hr = va.get(8, 4)
    dm = []
    for ks in range(28):
        k(f"s_add_u32 m0, s{sM}, {ks*4096}")
        dm.append(k(f"buffer_load_dwordx4 v{vd}, {WO}, s{sT} offen lds"))
        k(f"buffer_load_dwordx4 {vr(uf+4*ks,4)}, v{vu}, {WS}, s{sA} offen {ld}")
        if ks < 27: k(f"s_add_u32 s{sT}, s{sT}, {4*7168}\ns_add_u32 s{sA}, s{sA}, 4096")
    k(f"""s_mul_i32 s{sT}, s{sRB}, 57344
    s_lshl_b32 s{sU}, s{sG}, 13
    s_add_u32 s{sT}, s{sT}, s{sU}
    s_add_u32 s{sT}, s{sT}, {H_OFF}
    s_add_u32 s{sU}, s{sT}, 4096
    buffer_load_dwordx4 {vr(hr,4)}, v{vu}, {WS}, s{sT} offen {ld}
    buffer_load_dwordx4 {vr(hr+4,4)}, v{vu}, {WS}, s{sU} offen {ld}""")
    wa = [[va.get() for _ in range(4)] for _ in range(2)]
    k(f"""v_lshrrev_b32 v{t0}, 4, v0
    v_lshlrev_b32 v{t0}, 3, v{t0}
    v_bfe_u32 v{t1}, v0, 2, 2
    v_add_u32 v{t0}, v{t0}, v{t1}
    v_lshlrev_b32 v{t0}, 7, v{t0}
    v_and_b32 v{t1}, 3, v0
    v_lshl_add_u32 v{t0}, v{t1}, 3, v{t0}
    v_bfe_u32 v{t2}, v0, 3, 2""")
    for i in range(4):
        k(f"v_xor_b32 v{t1}, {i}, v{t2}")
        k(f"v_lshl_add_u32 v{wa[0][i]}, v{t1}, 5, v{t0}")
        k(f"v_add_u32 v{wa[1][i]}, {14*4096}, v{wa[0][i]}")
    acc = va.get(16, 4); NB, LA = 8, 6
    wf = [va.get(4, 4) for _ in range(NB)]
    G = 4
    def rd(n):
        ks, i = divmod(n, 4)
        if i == 0 and ks % G == 0:
            k.after(dm[ks:ks + G]); k("s_barrier")
        for p in range(2): k(f"ds_read_b64_tr_b16 {vr(wf[n%NB]+2*p,2)}, v{wa[ks//14][i]} offset:{(ks%14)*4096+p*512}")
    for n in range(LA): rd(n)
    for n in range(112):
        ks, i = divmod(n, 4)
        if n + LA < 112: rd(n + LA)
        k(f"{MF16} {vr(acc+4*i,4)}, {vr(wf[n%NB],4)}, {vr(uf+4*ks,4)}, {'0' if ks == 0 else vr(acc+4*i,4)}")
    pk = uf
    k(f"""v_and_b32 v{vd}, 15, v0
    v_mul_u32_u24 v{vd}, 896, v{vd}
    v_bfe_u32 v{t1}, v0, 4, 1
    v_lshl_add_u32 v{vd}, v{t1}, 5, v{vd}
    v_lshrrev_b32 v{t1}, 5, v0
    v_lshl_add_u32 v{vd}, v{t1}, 4, v{vd}
    s_lshl_b32 s{sT}, s{sRB}, 2
    s_add_u32 s{sT}, s{sT}, s3
    s_mul_i32 s{sT}, s{sT}, {16*896}
    s_lshl_b32 s{sU}, s{sG}, 7
    s_add_u32 s{sT}, s{sT}, s{sU}""")
    for j in range(8):
        k(f"v_lshlrev_b32 v{t0}, 16, v{hr+j}\nv_and_b32 v{t1}, 0xffff0000, v{hr+j}")
        k(f"v_add_f32 v{acc+2*j}, v{acc+2*j}, v{t0}\nv_add_f32 v{acc+2*j+1}, v{acc+2*j+1}, v{t1}")
        k(f"v_cvt_pk_bf16_f32 v{pk+j}, v{acc+2*j}, v{acc+2*j+1}")
    for j in range(2):
        for e in range(2): k(f"v_permlane16_swap_b32 v{pk+4*j+e}, v{pk+4*j+2+e}")
    for j in range(2): k(f"buffer_store_dwordx4 {vr(pk+4*j,4)}, v{vd}, {OUT}, s{sT} offen offset:{64*j}")

def kernels(mk, opts):
    global MAP
    for o in opts:
        if o.startswith("map="): MAP = o[4:]
    return [mk("wo", phase_w, W_LDS), mk("win", phase_c, C_LDS), mk("sp", phase_d, D_LDS), mk("wout", phase_e, E_LDS)]
```

```python
import sys
from common import *
from ph_a import *
from ph_b import *
def mk(name, fn, lds, **kw):
    k = Kern(name); va = Alloc(1, 256)
    prologue(k); fn(k, va, **kw); epilogue(k)
    nv = (va.peak + 7) // 8 * 8
    return (k, nv, nv, lds, 256, 256)
def build(opts=()):
    ks = [mk("qkv", phase_a, A_LDS), mk("attn", phase_b, B_LDS, force_slow=("slow" in opts))]
    try:
        import ph_rest
        ks += ph_rest.kernels(mk, opts)
    except ImportError:
        pass
    return wrap(ks)
if __name__ == "__main__":
    out = sys.argv[1] if len(sys.argv) > 1 else "sequential_preLN__mha_block__mixer_gmlp__prompt.s"
    open(out, "w").write(build(sys.argv[2:]))
```
